```python
import torch

def _softmax(x, axis=-1):
    return torch.softmax(x, dim=axis)
def _gelu(x):
    return torch.nn.functional.gelu(x, approximate="tanh")
def _silu(x):
    return torch.nn.functional.silu(x)
def _sigmoid(x):
    return torch.sigmoid(x)
def _layernorm(x, axis=-1, eps=1e-5):
    m = x.mean(dim=axis, keepdim=True)
    v = x.var(dim=axis, keepdim=True, unbiased=False)
    return (x - m) / torch.sqrt(v + eps)
def _scatter_add(tgt, idx, src, axis=0):
    return tgt.clone().index_add_(axis, idx, src)
def _segment_sum(src, seg, n):
    out = torch.zeros((n,) + src.shape[1:], dtype=src.dtype)
    return out.index_add_(0, seg, src)
def _pad(x, pw):
    flat = tuple(v for pair in reversed(pw) for v in pair)
    return torch.nn.functional.pad(x, flat)

kernel_name = 'recurrent_scan__compressed_kv_cla__glu_gated_geglu__decode'

def setup_inputs():

    _w = (lambda a: (lambda t: t.to(torch.bfloat16) if t.is_floating_point() else t)(torch.as_tensor(a)))
    def _A_setup():
        B, H, Sq, Sk, D, M = 4, 32, 1, 4096, 128, 576
        Dc = 4 * D
        return {
            "x": _w((lambda *s: torch.randn(*s, dtype=torch.bfloat16) * 0.05)(B, Sq, M)),
            "c_kv": _w((lambda *s: torch.randn(*s, dtype=torch.bfloat16) * 1.6)(B, Sk, Dc)),
            "w_q": _w((lambda *s: torch.randn(*s, dtype=torch.bfloat16) * 1.6)(M, H, D) * (M ** -0.5)),
            "w_uk": _w((lambda *s: torch.randn(*s, dtype=torch.bfloat16) * 1.6)(Dc, H, D) * (Dc ** -0.5)),
            "w_uv": _w((lambda *s: torch.randn(*s, dtype=torch.bfloat16) * 1.6)(Dc, H, D) * (Dc ** -0.5)),
            "w_o": _w((lambda *s: torch.randn(*s, dtype=torch.bfloat16) * 1.6)(H, D, M) * ((H * D) ** -0.5)),
        }
    _A_in = _A_setup()

    def _B_setup():
        B, S, Dm, Df = 4, 1, 576, 4608
        return {
            "x": _w((lambda *s: torch.randn(*s, dtype=torch.bfloat16) * 0.05)(B, S, Dm)),
            "w_gate": _w((lambda *s: torch.randn(*s, dtype=torch.bfloat16) * 0.2)(Dm, Df) * (Dm ** -0.5)),
            "w_up": _w((lambda *s: torch.randn(*s, dtype=torch.bfloat16) * 0.2)(Dm, Df) * (Dm ** -0.5)),
            "w_down": _w((lambda *s: torch.randn(*s, dtype=torch.bfloat16) * 0.2)(Df, Dm) * (Df ** -0.5)),
        }
    _B_in = _B_setup()

    return {
        "A_x": _A_in["x"],
        "A_c_kv": _A_in["c_kv"],
        "A_w_q": _A_in["w_q"],
        "A_w_uk": _A_in["w_uk"],
        "A_w_uv": _A_in["w_uv"],
        "A_w_o": _A_in["w_o"],
        "B_x": _B_in["x"],
        "B_w_gate": _B_in["w_gate"],
        "B_w_up": _B_in["w_up"],
        "B_w_down": _B_in["w_down"],
    }

def reference(A_x, A_c_kv, A_w_q, A_w_uk, A_w_uv, A_w_o, B_x, B_w_gate, B_w_up, B_w_down):
    def _A_ref(x, c_kv, w_q, w_uk, w_uv, w_o):
        B, Sq, M = x.shape[0], x.shape[1], x.shape[2]
        Sk = c_kv.shape[1]
        H, D = w_q.shape[1], w_q.shape[2]
        q = torch.einsum("bqm,mhd->bhqd", x, w_q)
        k = torch.einsum("bkc,chd->bhkd", c_kv, w_uk)
        v = torch.einsum("bkc,chd->bhkd", c_kv, w_uv)
        scores = torch.einsum("bhqd,bhkd->bhqk", q, k) * (D ** -0.5)
        off = Sk - Sq
        qi = torch.arange(Sq)[:, None]
        kj = torch.arange(Sk)[None, :]
        cmask = kj <= (qi + off)
        scores = torch.where(cmask[None, None], scores, -1e9)
        p = _softmax(scores, axis=-1)
        ctx = torch.einsum("bhqk,bhkd->bhqd", p, v)
        return torch.einsum("bhqd,hdm->bqm", ctx, w_o)

    def _B_ref(x, w_gate, w_up, w_down):
        g = torch.einsum("bsd,df->bsf", x, w_gate)
        u = torch.einsum("bsd,df->bsf", x, w_up)
        h = _gelu(g) * u
        return torch.einsum("bsf,fd->bsd", h, w_down)

    x = A_x
    xn = _layernorm(x, axis=-1)
    s = _A_ref(xn, A_c_kv, A_w_q, A_w_uk, A_w_uv, A_w_o)
    g = _silu(_B_ref(xn, B_w_gate, B_w_up, B_w_down))
    return x + s * g
```

```python
KN = "recurrent_scan__compressed_kv_cla__glu_gated_geglu__decode"
HDR = """; Kernarg layout for this problem (104 bytes, ptrs only, base s[0:1]):
"""
SIZES = {0: 4608, 1: 16777216, 2: 4718592, 3: 4194304, 4: 4194304, 5: 4718592, 6: 4608,
         7: 5308416, 8: 5308416, 9: 5308416, 10: 4608, 11: 256, 12: 268435456}

class Asm:
    def __init__(self):
        self.lines = []
        self.nlab = 0
    def __call__(self, s):
        for ln in s.split("\n"):
            ln = ln.strip()
            if not ln: continue
            if ln.endswith(":") or ln.startswith("."):
                self.lines.append(ln)
            else:
                self.lines.append("    " + ln)
    def label(self, prefix="L"):
        self.nlab += 1
        return f"{prefix}_{self.nlab}"
    def text(self):
        return "\n".join(self.lines) + "\n"

def kernel_begin(name):
    return f""".globl {name}
.p2align 8
.type {name},@function
{name}:
"""

def kernel_desc(name, vgpr, sgpr=102, accum=None):
    if accum is None:
        accum = min(256, (vgpr + 3) // 4 * 4)
    return f""".amdhsa_kernel {name}
  .amdhsa_next_free_vgpr {vgpr}
  .amdhsa_next_free_sgpr {sgpr}
  .amdhsa_accum_offset {accum}
  .amdhsa_group_segment_fixed_size 0
  .amdhsa_kernarg_size 104
  .amdhsa_user_sgpr_count 2
  .amdhsa_user_sgpr_kernarg_segment_ptr 1
  .amdhsa_system_sgpr_workgroup_id_x 1
  .amdhsa_float_denorm_mode_32 3
  .amdhsa_float_denorm_mode_16_64 3
.end_amdhsa_kernel
"""

def single_file(body, grid, block, lds, vgpr, sgpr=102, accum=None, name=KN + "_kernel"):
    return (HDR + f"; @launch grid=({grid},1,1) block=({block},1,1) lds={lds}\n"
            + '.amdgcn_target "amdgcn-amd-amdhsa--gfx950"\n.text\n' + kernel_begin(name) + body
            + '.section .rodata,"a"\n.p2align 6\n' + kernel_desc(name, vgpr, sgpr, accum))

def list_file(kernels):
    s = HDR
    for k in kernels:
        s += f"; @launch kernel={k['name']} grid=({k['grid']},1,1) block=({k['block']},1,1) lds={k['lds']}\n"
    s += '.amdgcn_target "amdgcn-amd-amdhsa--gfx950"\n.text\n'
    seen = set()
    for k in kernels:
        if k['name'] in seen: continue
        seen.add(k['name'])
        s += kernel_begin(k['name']) + k['body']
    s += '.section .rodata,"a"\n'
    seen = set()
    for k in kernels:
        if k['name'] in seen: continue
        seen.add(k['name'])
        s += ".p2align 6\n" + kernel_desc(k['name'], k['vgpr'], k.get('sgpr', 102), k.get('accum'))
    return s
```

```python
import re

TRANS = ("v_exp_f32", "v_log_f32", "v_rcp_f32", "v_rsq_f32", "v_sqrt_f32", "v_sin_f32", "v_cos_f32", "v_rcp_iflag_f32")
MFMA_PASSES = {"v_mfma_f32_16x16x32_bf16": 4, "v_mfma_f32_16x16x16_bf16": 4, "v_mfma_f32_32x32x16_bf16": 8,
               "v_mfma_f32_4x4x4_16b_bf16": 2, "v_mfma_f32_16x16x4_f32": 8}
D_TO_AB = {2: 5, 4: 8, 8: 12, 16: 20}
D_TO_C_OVL = {2: 4, 4: 6, 8: 10, 16: 18}
C_WAR = {2: 1, 4: 3, 8: 7, 16: 15}

def regs_of(tok):
    tok = tok.strip()
    tok = tok.lstrip("-")
    if tok.startswith("abs(") and tok.endswith(")"): tok = tok[4:-1]
    if tok.startswith("|"): tok = tok.strip("|")
    m = re.fullmatch(r"([vsa])(\d+)", tok)
    if m: return {(m.group(1), int(m.group(2)))}
    m = re.fullmatch(r"([vsa])\[(\d+):(\d+)\]", tok)
    if m: return {(m.group(1), k) for k in range(int(m.group(2)), int(m.group(3)) + 1)}
    if tok == "vcc": return {("s", "vcc")}
    if tok in ("vcc_lo", "vcc_hi"): return {("s", "vcc")}
    if tok == "exec": return {("s", "exec")}
    if tok == "m0": return {("s", "m0")}
    return set()

class Ins:
    def __init__(self, text):
        self.text = text
        t = text.split(";")[0].strip()
        self.op = t.split()[0]
        rest = t[len(self.op):].strip()
        ops = []; depth = 0; cur = ""
        for ch in rest:
            if ch == "[": depth += 1
            if ch == "]": depth -= 1
            if ch == "," and depth == 0:
                ops.append(cur.strip()); cur = ""
            else: cur += ch
        if cur.strip(): ops.append(cur.strip())
        self.mods = ""
        if ops:
            parts = ops[-1].split(None, 1)
            ops[-1] = parts[0]
            self.mods = parts[1] if len(parts) > 1 else ""
        self.ops = ops
        op = self.op
        base = re.sub(r"_(e32|e64|dpp|sdwa)$", "", op)
        self.base = base
        self.is_mfma = base.startswith("v_mfma")
        self.is_valu = base.startswith("v_") and not self.is_mfma
        self.is_vmem = base.startswith(("buffer_", "global_", "flat_"))
        self.is_ds = base.startswith("ds_")
        self.is_salu = base.startswith("s_")
        self.is_dpp = op.endswith("_dpp") or "row_" in self.mods or "quad_perm" in self.mods
        self.is_trans = base in TRANS
        self.is_perml = base.startswith("v_permlane")
        self.is_rdlane = base in ("v_readlane_b32", "v_readfirstlane_b32")
        self.w = set(); self.r = set()
        R = [regs_of(o) for o in ops]
        if self.is_mfma:
            self.w = R[0]; self.rA = R[1]; self.rB = R[2]; self.rC = R[3]; self.r = R[1] | R[2] | R[3]
            self.passes = MFMA_PASSES[base]
        elif self.is_valu:
            if base.startswith("v_cmpx"):
                self.w = R[0] | {("s", "exec")}; self.r = set().union(*R[1:])
            elif base.startswith("v_cmp"):
                self.w = R[0]; self.r = set().union(*R[1:])
            elif base in ("v_add_co_u32", "v_sub_co_u32", "v_addc_co_u32", "v_subb_co_u32", "v_mad_u64_u32"):
                self.w = R[0] | R[1]; self.r = set().union(*R[2:])
            elif self.is_perml and "swap" in base:
                self.w = R[0] | R[1]; self.r = R[0] | R[1]
            elif base == "v_nop":
                pass
            else:
                self.w = R[0]; self.r = set().union(*R[1:]) if len(R) > 1 else set()
                if base in ("v_fmac_f32", "v_dot2c_f32_bf16", "v_writelane_b32") or self.is_dpp or "sdwa" in op:
                    self.r |= R[0]
        elif self.is_vmem:
            lds = re.search(r"\blds\b", self.mods) or "_lds_" in base
            if "store" in base or ("atomic" in base):
                self.r = set().union(*R)
                if base.startswith("buffer_"): self.sdata = R[0]
                else: self.sdata = R[1]
                if "atomic" in base and "sc0" in self.mods: self.w = R[0]
            elif base in ("buffer_inv", "buffer_wbl2"):
                pass
            elif lds:
                self.r = set().union(*R) | {("s", "m0")}
            else:
                self.w = R[0]; self.r = set().union(*R[1:])
        elif self.is_ds:
            if "read" in base or "permute" in base or "swizzle" in base:
                self.w = R[0]; self.r = set().union(*R[1:])
            else:
                self.r = set().union(*R)
        elif self.is_salu:
            if base.startswith(("s_cmp", "s_cbranch", "s_branch", "s_waitcnt", "s_barrier", "s_nop", "s_sleep", "s_setprio", "s_endpgm", "s_bitcmp")):
                self.r = set().union(*R) if R else set()
            else:
                self.w = R[0] if R else set(); self.r = set().union(*R[1:]) if len(R) > 1 else set()
                if "saveexec" in base: self.w |= {("s", "exec")}
    def states(self):
        if self.base == "s_nop": return int(self.ops[0], 0) + 1
        return 1

def vonly(s): return {x for x in s if x[0] in "va"}
def sonly(s): return {x for x in s if x[0] == "s"}

def need(p, c):
    n = 0
    if c is None:
        if p.is_mfma: return D_TO_AB[p.passes]
        if p.is_valu:
            n = 2
            if sonly(p.w): n = 5
            return n
        if p.is_vmem and hasattr(p, "sdata") and len(p.sdata) >= 3: return 2
        if p.is_salu and ("s", "m0") in p.w: return 1
        return 0
    if p.is_mfma:
        ps = p.passes
        if c.is_mfma:
            if p.w & (c.rA | c.rB): n = max(n, D_TO_AB[ps])
            if p.w & c.rC:
                if p.w == c.rC and c.passes == ps: n = max(n, 2 if ps == 2 else 0)
                else: n = max(n, D_TO_C_OVL[ps])
            elif p.w & c.w: n = max(n, D_TO_C_OVL[ps])
        elif c.is_valu or c.is_vmem or c.is_ds:
            if p.w & (c.r | c.w): n = max(n, D_TO_AB[ps])
            if c.is_valu and (p.rC & c.w): n = max(n, C_WAR[ps])
    elif p.is_valu:
        pv = vonly(p.w); psg = sonly(p.w)
        if c.is_mfma and (pv & c.r): n = max(n, 2)
        if c.is_mfma and ("s", "exec") in psg: n = max(n, 4)
        if c.is_valu:
            if c.is_dpp and (pv & c.r): n = max(n, 2)
            if c.is_dpp and ("s", "exec") in psg: n = max(n, 5)
            if c.is_perml and (pv & c.r): n = max(n, 2)
            if c.is_perml and ("s", "exec") in psg: n = max(n, 4)
            if c.is_rdlane and (pv & c.r): n = max(n, 1)
            if c.is_rdlane and ("s", "exec") in psg: n = max(n, 4)
            if p.is_trans and not c.is_trans and (pv & c.r): n = max(n, 1)
            if psg & c.r:
                n = max(n, 4 if c.base in ("v_readlane_b32", "v_writelane_b32") else 2)
            if ("sdwa" in p.op or "op_sel" in p.mods) and (pv & (c.r | c.w)): n = max(n, 1)
        if c.is_vmem and (psg & c.r): n = max(n, 5)
        if c.is_salu and (psg & c.r): n = max(n, 1)
        if c.base.startswith("s_cbranch_vcc") and ("s", "vcc") in psg: n = max(n, 1)
    elif p.is_vmem:
        if hasattr(p, "sdata") and len(p.sdata) >= 3 and (p.sdata & c.w):
            n = max(n, 2 if c.is_valu else 1)
    elif p.is_salu:
        if ("s", "m0") in p.w and ("s", "m0") in c.r and (c.is_vmem or c.is_ds): n = max(n, 1)
    return n

def fix(lines):
    out = []; hist = []
    added = 0
    def pad(k):
        nonlocal added
        while k > 0:
            m = min(k, 16)
            t = f"    s_nop {m-1}"
            out.append(t); hist.append(Ins(t.strip())); k -= m; added += m
    def deficit(c):
        d = 0; dist = 0
        for p in reversed(hist[-24:]):
            d = max(d, need(p, c) - dist)
            dist += p.states()
        return d
    for ln in lines:
        s = ln.strip()
        if not s or s.startswith(";") or s.startswith("."):
            out.append(ln); continue
        if s.endswith(":"):
            pad(deficit(None)); out.append(ln); hist = []; continue
        c = Ins(s)
        if c.base.startswith(("s_cbranch", "s_branch")):
            d = max(deficit(c), deficit(None) - 1)
            pad(d)
        else:
            pad(deficit(c))
        out.append(ln); hist.append(c)
    return out, added
```

```python
import sys, math
sys.path.insert(0, "work")
from asmlib import *
import hazard

EPOCH = 0
FLAGS = 0x1000
HA    = 0x10000
H1    = 0x50000
LSE   = 0x70000
H3    = 0x80000
H2    = 0x200000
STAMP = 0x800000
DUMP  = 0x900000

SX, SKV, SWQ, SWUK, SWUV, SWO, SWG, SWU, SWD, SOUT, SWS = [8 + 4 * i for i in range(11)]
SRD_ARG = {SX: 0, SKV: 1, SWQ: 2, SWUK: 3, SWUV: 4, SWO: 5, SWG: 7, SWU: 8, SWD: 9, SOUT: 10, SWS: 12}
def srd(r): return f"s[{r}:{r+3}]"
def vr(b, n=1): return f"v{b}" if n == 1 else f"v[{b}:{b+n-1}]"
SELLO, SELHI = "s6", "s7"
TAG = "s54"
SPIN = 1 << 18
def f32(x):
    import struct
    return hex(struct.unpack("<I", struct.pack("<f", x))[0])
def fsw(x):
    return (x & 1) | (((x >> 1) & 3) << 2) | (((x >> 3) & 1) << 1)

class Gen:
    def __init__(self, **P):
        self.P = dict(stamps=False, h2pad=128, nbw=4, flag_early=True, g_early=0, de_early=4, lse_pos=0,
                      warm=True, fsleep=2, psleep=1, dump=False, kwin=0)
        self.P.update(P)
        self.a = Asm()
        self.RS = 16384 + self.P["h2pad"]
    def stamp(self, k):
        if self.P["stamps"]: self.a(f"s_memrealtime s[{70+2*k}:{71+2*k}]")
    def finish(self):
        a = self.a
        if self.P["stamps"]: a("s_branch L_stampdump")
        else: a("s_endpgm")
    def load_unit(self, dst, n, voff, s, soff, stride, flags="nt", first=0):
        a = self.a
        for r in range(first, n):
            a(f"buffer_load_dwordx4 {vr(dst+4*r,4)}, {voff}, {srd(s)}, {soff} offen {flags}")
            if r < n - 1: a(f"s_add_u32 {soff}, {soff}, {stride}")
    def perm_e(self, src, dst, n, e):
        p = e >> 1; sel = SELHI if e & 1 else SELLO
        for q in range(n // 2):
            self.a(f"v_perm_b32 v{dst+e*(n//2)+q}, v{src+4*(2*q+1)+p}, v{src+4*(2*q)+p}, {sel}")
    def perm_unit(self, src, dst, n):
        for e in range(8): self.perm_e(src, dst, n, e)
    def mfma_e(self, acc, af, bb, n, e):
        if n == 8: self.a(f"v_mfma_f32_16x16x32_bf16 {vr(acc+4*e,4)}, {vr(af,4)}, {vr(bb+4*e,4)}, 0")
        else: self.a(f"v_mfma_f32_16x16x16_bf16 {vr(acc+4*e,4)}, {vr(af,2)}, {vr(bb+2*e,2)}, 0")
    def mfma_unit(self, acc, af, bb, n):
        for e in range(8): self.mfma_e(acc, af, bb, n, e)
    def perm_mfma_unit(self, src, tmp, acc, af, n):
        self.perm_e(src, tmp, n, 0)
        for e in range(8):
            if e < 7: self.perm_e(src, tmp, n, e + 1)
            self.mfma_e(acc, af, tmp, n, e)
    def kxsum(self, acc, z):
        a = self.a
        for e in range(8): a(f"v_permlane16_swap_b32 v{acc+4*e}, v{acc+4*e+1}")
        for e in range(8): a(f"v_add_f32_dpp v{z+e}, v{acc+4*e+1}, v{acc+4*e} row_ror:8 row_mask:0xf bank_mask:0xf")
    def afrag_addr(self, dst, t0, rowbytes, kxbytes, gbytes):
        a = self.a
        a(f"v_lshrrev_b32 v{t0}, 2, v3"); a(f"v_and_b32 v{t0}, 2, v{t0}")
        a(f"v_add_u32 v{t0}, v{t0}, v3"); a(f"v_and_b32 v{t0}, 3, v{t0}")
        a(f"v_mul_u32_u24 v{dst}, {rowbytes}, v{t0}")
        a(f"v_bfe_u32 v{t0}, v3, 2, 1")
        a(f"v_mul_u32_u24 v{t0}, {kxbytes}, v{t0}")
        a(f"v_add_u32 v{dst}, v{dst}, v{t0}")
        a(f"v_mul_u32_u24 v{t0}, {gbytes}, v2")
        a(f"v_add_u32 v{dst}, v{dst}, v{t0}")
    def unit_voff(self, dst, t0, stride, n, gperm=False):
        a = self.a
        a(f"v_lshrrev_b32 v{t0}, 3, v3")
        a(f"v_lshlrev_b32 v{t0}, 2, v{t0}")
        if gperm:
            a(f"v_lshrrev_b32 v{dst}, 1, v2"); a(f"v_xor_b32 v{dst}, v{dst}, v2")
            a(f"v_add_u32 v{t0}, v{t0}, v{dst}")
        else:
            a(f"v_add_u32 v{t0}, v{t0}, v2")
        a(f"v_mul_u32_u24 v{t0}, {n*stride}, v{t0}")
        a(f"v_and_b32 v{dst}, 7, v3")
        a(f"v_lshl_add_u32 v{dst}, v{dst}, 4, v{t0}")
    def rowsum16(self, v, op="v_add_f32"):
        for r in (8, 4, 2, 1):
            self.a(f"{op}_dpp v{v}, v{v}, v{v} row_ror:{r} row_mask:0xf bank_mask:0xf")
    def x16(self, v, t, op="v_add_f32"):
        a = self.a
        a(f"v_mov_b32 v{t}, v{v}"); a(f"v_permlane16_swap_b32 v{v}, v{t}"); a(f"{op} v{v}, v{v}, v{t}")
    def x32(self, v, t, op="v_add_f32"):
        a = self.a
        a(f"v_mov_b32 v{t}, v{v}"); a(f"v_permlane32_swap_b32 v{v}, v{t}"); a(f"{op} v{v}, v{v}, v{t}")
    def rbf(self, v):
        self.a(f"v_cvt_pk_bf16_f32 v{v}, v{v}, v{v}"); self.a(f"v_and_b32 v{v}, 0xffff0000, v{v}")
    def lowmask(self):
        self.a("s_mov_b32 exec_lo, 0x00ff00ff"); self.a("s_mov_b32 exec_hi, 0x00ff00ff")
    def fullmask(self): self.a("s_mov_b64 exec, -1")
    def bar(self): self.a("s_barrier")
    def h3_addr(self, vdst, t0, sdst, sp):
        a = self.a
        a(f"v_mul_u32_u24 v{t0}, {9*200*128}, v2")
        a(f"v_and_b32 v{vdst}, 7, v1")
        a(f"v_lshl_add_u32 v{vdst}, v{vdst}, 4, v{t0}")
        a(f"s_mul_i32 {sdst}, s3, 200"); a(f"s_add_u32 {sdst}, {sdst}, {sp}")
        a(f"s_lshl_b32 {sdst}, {sdst}, 7"); a(f"s_add_u32 {sdst}, {sdst}, {H3}")
    def out_unit(self, acc, z, voff, soff):
        a = self.a
        self.kxsum(acc, z)
        for q in range(4): a(f"v_cvt_pk_bf16_f32 v{acc+q}, v{z+2*q}, v{z+2*q+1}")
        for q in range(4): a(f"v_min_u32 v{acc+q}, -2, v{acc+q}")
        self.lowmask()
        a(f"buffer_store_dwordx4 {vr(acc,4)}, v{voff}, {srd(SWS)}, {soff} offen sc1")
        self.fullmask()
    def red_write(self, z, vaddr, off=0):
        self.lowmask()
        self.a(f"ds_write_b128 v{vaddr}, {vr(z,4)} offset:{off}")
        self.a(f"ds_write_b128 v{vaddr}, {vr(z+4,4)} offset:{off+16}")
        self.fullmask()
    def red_read(self, dst, vaddr, n, off0=0):
        for k in range(0, n - 1, 2):
            self.a(f"ds_read2st64_b32 {vr(dst+k,2)}, v{vaddr} offset0:{off0+4*k} offset1:{off0+4*k+4}")
        if n & 1:
            self.a(f"ds_read_b32 v{dst+n-1}, v{vaddr} offset:{(off0+4*(n-1))*256}")
    def tree_add(self, base, n):
        regs = list(range(base, base + n))
        while len(regs) > 1:
            nxt = []
            for k in range(0, len(regs) - 1, 2):
                self.a(f"v_add_f32 v{regs[k]}, v{regs[k]}, v{regs[k+1]}"); nxt.append(regs[k])
            if len(regs) & 1: nxt.append(regs[-1])
            regs = nxt
    def chk_max(self, base, n, dst):
        a = self.a
        a(f"v_max3_u32 v{dst}, v{base}, v{base+1}, v{base+2}")
        k = 3
        while k + 1 < n:
            a(f"v_max3_u32 v{dst}, v{dst}, v{base+k}, v{base+k+1}"); k += 2
        if k < n: a(f"v_max_u32 v{dst}, v{dst}, v{base+k}")
    def spin_head(self, lab, cnt="s55"):
        self.a(f"s_mov_b32 {cnt}, 0"); self.a(f"{lab}:")
    def spin_tail(self, lab, cnt="s55", sleep=0):
        a = self.a
        done = a.label("L_sd")
        a(f"s_cbranch_vccz {done}")
        if sleep: a(f"s_sleep {sleep}")
        a(f"s_add_u32 {cnt}, {cnt}, 1")
        a(f"s_cmp_lt_u32 {cnt}, {SPIN}")
        a(f"s_cbranch_scc1 {lab}")
        a(f"{done}:")
    def poll_flags(self, t, which, sleep):
        a = self.a
        lab = a.label("L_pf")
        if which == "all":
            a(f"v_lshlrev_b32 v{t+4}, 4, v1")
        else:
            a(f"v_lshlrev_b32 v{t+4}, 3, v1")
        a(f"s_mov_b32 s56, {FLAGS + (512 if which == 'K' else 0)}")
        self.spin_head(lab)
        if which == "all":
            a(f"buffer_load_dwordx4 {vr(t,4)}, v{t+4}, {srd(SWS)}, s56 offen sc1")
            a("s_waitcnt vmcnt(0)")
            for k in range(4): a(f"v_xor_b32 v{t+k}, {TAG}, v{t+k}")
            a(f"v_or3_b32 v{t}, v{t}, v{t+1}, v{t+2}"); a(f"v_or_b32 v{t}, v{t}, v{t+3}")
        else:
            a(f"buffer_load_dwordx2 {vr(t,2)}, v{t+4}, {srd(SWS)}, s56 offen sc1")
            a("s_waitcnt vmcnt(0)")
            for k in range(2): a(f"v_xor_b32 v{t+k}, {TAG}, v{t+k}")
            a(f"v_or_b32 v{t}, v{t}, v{t+1}")
        a(f"v_cmp_ne_u32 vcc, 0, v{t}")
        self.spin_tail(lab, sleep=sleep)
    def store_flag(self, t):
        a = self.a
        a(f"v_mov_b32 v{t}, {TAG}"); a(f"v_mov_b32 v{t+1}, 0")
        a(f"s_lshl_b32 s56, s2, 2"); a(f"s_add_u32 s56, s56, {FLAGS}")
        a("s_mov_b64 exec, 1")
        a(f"buffer_store_dword v{t}, v{t+1}, {srd(SWS)}, s56 offen sc1")
        self.fullmask()
    def mk_tag(self):
        a = self.a
        a(f"s_mul_i32 {TAG}, {TAG}, 1664525"); a(f"s_add_u32 {TAG}, {TAG}, 1013904223")

    def prologue(self):
        a = self.a
        self.stamp(0)
        a("s_cmp_ge_u32 s2, 256"); a("s_cbranch_scc1 L_end")
        for r, arg in SRD_ARG.items():
            a(f"s_load_dwordx2 s[{r}:{r+1}], s[0:1], {arg*8}")
        a("v_and_b32 v1, 63, v0"); a("v_lshrrev_b32 v4, 6, v0")
        a("v_lshrrev_b32 v2, 4, v1"); a("v_and_b32 v3, 15, v1")
        a("v_readfirstlane_b32 s3, v4")
        a("s_and_b32 s4, s2, 7"); a("s_lshr_b32 s5, s2, 3")
        if self.P["warm"]:
            a("s_cmp_lg_u32 s3, 8"); a("s_cbranch_scc1 L_nowarm")
            a("s_getpc_b64 s[52:53]")
            a("L_pc:")
            a("s_lshl_b32 s55, s5, 10")
            a("v_lshlrev_b32 v4, 7, v1"); a("v_add_u32 v4, s55, v4")
            a("v_min_u32 v4, L_codeend-L_pc-4, v4")
            a("s_mov_b64 exec, 0xff")
            a("global_load_dword v160, v4, s[52:53]")
            self.fullmask()
            a("L_nowarm:")
        for r, arg in SRD_ARG.items():
            a(f"s_mov_b32 s{r+2}, {SIZES[arg]}"); a(f"s_mov_b32 s{r+3}, 0x20000")
        a(f"s_mov_b32 {SELLO}, 0x05040100"); a(f"s_mov_b32 {SELHI}, 0x07060302")
        a("s_cmp_ge_u32 s5, 16"); a("s_cbranch_scc1 L_K")

    XN, QL, HB, RED = 0, 4608, 5632, 8192
    def role_P(self):
        a = self.a; P = self.P
        XN, QL, HB, RED = self.XN, self.QL, self.HB, self.RED
        WQ, WUK, XR, T, ACC, Z, AF = 16, 32, 96, 108, 124, 156, 164
        nbw = P["nbw"]; ntile = 8 // nbw
        a("s_lshr_b32 s57, s5, 2"); a("s_lshl_b32 s59, s4, 2"); a("s_add_u32 s57, s57, s59")
        a("s_and_b32 s58, s5, 3")
        self.unit_voff(5, 4, 8192, 4)
        a("s_lshr_b32 s59, s58, 1"); a(f"s_mul_i32 s59, s59, {288*8192}")
        a("s_lshl_b32 s60, s3, 18"); a("s_add_u32 s59, s59, s60")
        a("s_lshl_b32 s60, s57, 8"); a("s_add_u32 s59, s59, s60")
        a("s_and_b32 s61, s58, 1"); a("s_lshl_b32 s61, s61, 7"); a("s_add_u32 s59, s59, s61")
        a("v_lshlrev_b32 v6, 1, v1")
        a("s_mul_i32 s61, s3, 1152")
        a("s_waitcnt lgkmcnt(0)")
        self.stamp(1)
        a(f"s_load_dword {TAG}, s[{SWS}:{SWS+1}], {EPOCH}")
        a("s_cmp_ge_u32 s3, 4"); a("s_cbranch_scc1 L_P_nox")
        for jx in range(9):
            a(f"buffer_load_ushort v{XR+jx}, v6, {srd(SX)}, s61 offen offset:{128*jx}")
        a("L_P_nox:")
        self.load_unit(WQ, 4, "v5", SWQ, "s59", 8192)
        for k in range(4): a(f"v_mov_b32 v{8+k}, -1")
        a("s_mul_i32 s62, s4, 9"); a("s_add_u32 s62, s62, s5")
        a("s_add_u32 s63, s62, 128")
        self.h3_addr(7, 4, "s64", "s63")
        a("s_cmp_ge_u32 s5, 9"); a("s_cbranch_scc1 L_P_noclr")
        self.lowmask()
        a(f"buffer_store_dwordx4 v[8:11], v7, {srd(SWS)}, s64 offen sc1")
        self.fullmask()
        a("L_P_noclr:")
        b0 = 8 - nbw
        a(f"s_cmp_lt_u32 s3, {b0}"); a("s_cbranch_scc1 L_P_nob")
        a("s_cmp_ge_u32 s3, 8"); a("s_cbranch_scc1 L_P_nob")
        a(f"s_sub_u32 s65, s3, {b0}")
        a(f"v_lshlrev_b32 v12, 15, v3")
        a(f"v_mul_u32_u24 v4, {8*ntile}, v2"); a("v_add_u32 v12, v12, v4")
        a("s_lshl_b32 s66, s57, 10"); a("s_lshl_b32 s67, s58, 8"); a("s_add_u32 s66, s66, s67")
        a(f"s_mul_i32 s67, s65, {32*ntile}"); a("s_add_u32 s66, s66, s67"); a(f"s_add_u32 s66, s66, {H1}")
        a("s_mov_b32 exec_lo, 0x000f000f"); a("s_mov_b32 exec_hi, 0x000f000f")
        if ntile == 1: a(f"buffer_store_dwordx2 v[8:9], v12, {srd(SWS)}, s66 offen sc1")
        else:
            for k in range(ntile // 2): a(f"buffer_store_dwordx4 v[8:11], v12, {srd(SWS)}, s66 offen offset:{16*k} sc1")
        self.fullmask()
        a("v_lshrrev_b32 v4, 2, v3"); a(f"v_mul_u32_u24 v4, {4*ntile}, v4")
        a("v_and_b32 v13, 3, v3"); a("v_add_u32 v4, v4, v13")
        a("v_lshlrev_b32 v4, 13, v4"); a("v_lshl_add_u32 v13, v2, 4, v4")
        a("s_lshl_b32 s67, s58, 20"); a(f"s_mul_i32 s68, s65, {16*ntile*8192}"); a("s_add_u32 s67, s67, s68")
        a("s_lshl_b32 s68, s57, 8"); a("s_add_u32 s67, s67, s68")
        for t in range(ntile):
            for s in range(4):
                a(f"buffer_load_dwordx4 {vr(WUK+16*t+4*s,4)}, v13, {srd(SWUK)}, s67 offen offset:{64*s} nt")
            if t < ntile - 1: a(f"s_add_u32 s67, s67, {4*8192}")
        a("L_P_nob:")
        self.afrag_addr(14, 4, 1152, 32, 8)
        a("s_lshr_b32 s59, s58, 1"); a("s_mul_i32 s59, s59, 576"); a("s_lshl_b32 s60, s3, 6"); a("s_add_u32 s59, s59, s60")
        a("v_add_u32 v14, s59, v14")
        a("v_and_b32 v15, 7, v1"); a("v_lshlrev_b32 v15, 5, v15"); a("v_lshl_add_u32 v15, v2, 8, v15")
        a("s_lshl_b32 s59, s3, 10"); a(f"s_add_u32 s59, s59, {RED}"); a("v_add_u32 v15, s59, v15")
        a("s_cmp_ge_u32 s3, 4"); a("s_cbranch_scc1 L_P_noln")
        nb_after = 0 if b0 >= 4 else None
        a("s_waitcnt vmcnt(4)" if b0 >= 4 else "s_waitcnt vmcnt(4)")
        for jx in range(9): a(f"v_lshlrev_b32 v{XR+jx}, 16, v{XR+jx}")
        a(f"v_add_f32 v{T}, v{XR}, v{XR+1}")
        for jx in range(2, 9): a(f"v_add_f32 v{T}, v{T}, v{XR+jx}")
        self.rowsum16(T); self.x16(T, T+1); self.x32(T, T+1)
        a(f"v_mul_f32 v{T}, {f32(1/576)}, v{T}")
        a(f"v_sub_f32 v{T+2}, v{XR}, v{T}"); a(f"v_mul_f32 v{T+1}, v{T+2}, v{T+2}")
        for jx in range(1, 9):
            a(f"v_sub_f32 v{T+2}, v{XR+jx}, v{T}"); a(f"v_fmac_f32 v{T+1}, v{T+2}, v{T+2}")
        self.rowsum16(T+1); self.x16(T+1, T+2); self.x32(T+1, T+2)
        a(f"v_mul_f32 v{T+1}, {f32(1/576)}, v{T+1}")
        self.rbf(T); self.rbf(T+1)
        a(f"v_add_f32 v{T+1}, {f32(1e-5)}, v{T+1}"); self.rbf(T+1)
        a(f"v_sqrt_f32 v{T+1}, v{T+1}"); self.rbf(T+1)
        a(f"v_rcp_f32 v{T+1}, v{T+1}")
        a("v_add_u32 v6, s61, v6")
        for jx in range(9): a(f"v_sub_f32 v{XR+jx}, v{XR+jx}, v{T}")
        for jx in range(9): self.rbf(XR+jx)
        for jx in range(9): a(f"v_mul_f32 v{XR+jx}, v{XR+jx}, v{T+1}")
        for jx in range(0, 9, 2):
            o = min(jx + 1, 8)
            a(f"v_cvt_pk_bf16_f32 v{XR+jx}, v{XR+jx}, v{XR+o}")
            a(f"ds_write_b16 v6, v{XR+jx} offset:{XN+128*jx}")
            if jx + 1 < 9: a(f"ds_write_b16_d16_hi v6, v{XR+jx} offset:{XN+128*(jx+1)}")
        a("L_P_noln:")
        a("s_waitcnt lgkmcnt(0)")
        self.mk_tag()
        self.bar()
        self.stamp(2)
        a(f"ds_read_b64 {vr(AF,2)}, v14 offset:{XN}")
        a(f"s_cmp_lt_u32 s3, {b0}"); a("s_cbranch_scc1 L_P_w0")
        a("s_cmp_ge_u32 s3, 8"); a("s_cbranch_scc1 L_P_w0")
        a(f"s_waitcnt vmcnt({4*ntile + max(1, ntile//2)})")
        a("s_branch L_P_w1")
        a("L_P_w0:")
        a("s_waitcnt vmcnt(0)")
        a("L_P_w1:")
        self.stamp(3)
        a("s_waitcnt lgkmcnt(0)")
        self.perm_mfma_unit(WQ, T, ACC, AF, 4)
        self.kxsum(ACC, Z)
        self.red_write(Z, 15)
        a("v_lshlrev_b32 v4, 2, v0")
        a("s_waitcnt lgkmcnt(0)")
        self.bar()
        a(f"s_lshl_b32 s59, s57, 13"); a(f"s_add_u32 s59, s59, {HA}")
        a("s_cmp_ge_u32 s3, 4"); a("s_cbranch_scc1 L_P_nored")
        self.red_read(T, 4, 9, RED // 256)
        a("s_lshl_b32 s60, s58, 11"); a("s_add_u32 s60, s60, s59")
        a("v_lshlrev_b32 v4, 3, v0")
        a("s_waitcnt lgkmcnt(0)")
        self.tree_add(T, 9)
        a(f"v_mov_b32 v{T+1}, {TAG}")
        a(f"buffer_store_dwordx2 {vr(T,2)}, v4, {srd(SWS)}, s60 offen sc1")
        a("L_P_nored:")
        self.stamp(4)
        a("s_cmp_ge_u32 s3, 8"); a("s_cbranch_scc1 L_P_nogather")
        a("s_and_b32 s60, s3, 1"); a("s_lshl_b32 s60, s60, 11"); a("s_add_u32 s60, s60, s59")
        a("s_lshr_b32 s67, s3, 1"); a("s_lshl_b32 s67, s67, 9"); a("s_add_u32 s60, s60, s67")
        a("s_add_u32 s67, s60, 4096")
        a("v_lshlrev_b32 v4, 3, v1")
        self.spin_head("L_P_ha")
        a(f"buffer_load_dwordx2 {vr(T+4,2)}, v4, {srd(SWS)}, s60 offen sc1")
        a(f"buffer_load_dwordx2 {vr(T+6,2)}, v4, {srd(SWS)}, s67 offen sc1")
        a("s_waitcnt vmcnt(0)")
        a(f"v_xor_b32 v{T+5}, {TAG}, v{T+5}"); a(f"v_xor_b32 v{T+7}, {TAG}, v{T+7}")
        a(f"v_or_b32 v{T+5}, v{T+5}, v{T+7}")
        a(f"v_cmp_ne_u32 vcc, 0, v{T+5}")
        self.spin_tail("L_P_ha", sleep=P["psleep"])
        a(f"v_add_f32 v{T+4}, v{T+4}, v{T+6}")
        a(f"v_cvt_pk_bf16_f32 v{T+4}, v{T+4}, v{T+4}")
        a("v_lshlrev_b32 v4, 1, v0")
        a(f"ds_write_b16 v4, v{T+4} offset:{QL}")
        a("L_P_nogather:")
        a("s_waitcnt vmcnt(0) lgkmcnt(0)")
        self.bar()
        self.stamp(5)
        if P["flag_early"]:
            a("s_cmp_lg_u32 s3, 8"); a("s_cbranch_scc1 L_P_nf"); self.store_flag(T); a("L_P_nf:")
        a(f"s_cmp_lt_u32 s3, {b0}"); a("s_cbranch_scc1 L_P_nob2")
        a("s_cmp_ge_u32 s3, 8"); a("s_cbranch_scc1 L_P_nob2")
        a("v_and_b32 v4, 3, v3"); a("v_lshlrev_b32 v4, 8, v4"); a("v_lshl_add_u32 v4, v2, 4, v4")
        for s in range(4): a(f"ds_read_b128 {vr(T+4*s,4)}, v4 offset:{QL+64*s}")
        for s in range(4):
            a(f"s_waitcnt lgkmcnt({3-s})")
            for t in range(ntile):
                c = "0" if s == 0 else vr(ACC+4*t, 4)
                a(f"v_mfma_f32_16x16x32_bf16 {vr(ACC+4*t,4)}, {vr(WUK+16*t+4*s,4)}, {vr(T+4*s,4)}, {c}")
        for t in range(ntile):
            for q in range(2): a(f"v_cvt_pk_bf16_f32 v{Z+2*t+q}, v{ACC+4*t+2*q}, v{ACC+4*t+2*q+1}")
        for q in range(2 * ntile): a(f"v_min_u32 v{Z+q}, -2, v{Z+q}")
        a("s_mov_b32 exec_lo, 0x000f000f"); a("s_mov_b32 exec_hi, 0x000f000f")
        if ntile == 1: a(f"buffer_store_dwordx2 {vr(Z,2)}, v12, {srd(SWS)}, s66 offen sc1")
        else:
            for k in range(ntile // 2): a(f"buffer_store_dwordx4 {vr(Z+4*k,4)}, v12, {srd(SWS)}, s66 offen offset:{16*k} sc1")
        self.fullmask()
        if not P["flag_early"]:
            a("s_cmp_lg_u32 s3, 7"); a("s_cbranch_scc1 L_P_nob2"); self.store_flag(T)
        a("L_P_nob2:")
        self.stamp(6)
        a("s_cmp_ge_u32 s5, 9"); a("s_cbranch_scc1 L_F")
        self.role_G()
        a("L_F:")
        self.role_F()

    def role_G(self):
        a = self.a; P = self.P
        XN, QL, HB, RED = self.XN, self.QL, self.HB, self.RED
        WG_, WU_, WD_, T, AF = 16, 48, 80, 112, 164
        ACC = 124; Z = 156
        self.bar()
        self.unit_voff(5, 4, 9216, 8)
        self.unit_voff(6, 4, 1152, 8)
        a(f"s_mul_i32 s59, s3, {64*9216}"); a("s_lshl_b32 s60, s62, 7"); a("s_add_u32 s59, s59, s60")
        a("s_mov_b32 s60, s59")
        self.load_unit(WG_, 8, "v5", SWG, "s59", 9216)
        self.load_unit(WU_, 8, "v5", SWU, "s60", 9216)
        a(f"s_mul_i32 s59, s62, {64*1152}"); a("s_lshl_b32 s60, s3, 7"); a("s_add_u32 s59, s59, s60")
        self.load_unit(WD_, 8, "v6", SWD, "s59", 1152)
        self.stamp(7)
        self.afrag_addr(14, 4, 1152, 64, 16)
        a("s_lshl_b32 s59, s3, 7"); a("v_add_u32 v14, s59, v14")
        a(f"ds_read_b128 {vr(AF,4)}, v14 offset:{XN}")
        self.afrag_addr(14, 4, 128, 64, 16)
        def pm(src):
            for e in range(8):
                p = e >> 1; sel = SELHI if e & 1 else SELLO; tb = T + 4 * (e % 3)
                for q in range(4): a(f"v_perm_b32 v{tb+q}, v{src+4*(2*q+1)+p}, v{src+4*(2*q)+p}, {sel}")
                if e > 0:
                    a(f"v_mfma_f32_16x16x32_bf16 {vr(ACC+4*(e-1),4)}, {vr(AF,4)}, {vr(T+4*((e-1)%3),4)}, 0")
            a(f"v_mfma_f32_16x16x32_bf16 {vr(ACC+28,4)}, {vr(AF,4)}, {vr(T+4*(7%3),4)}, 0")
        a("s_waitcnt vmcnt(16) lgkmcnt(0)")
        pm(WG_); self.kxsum(ACC, Z); self.red_write(Z, 15)
        a("s_waitcnt vmcnt(8)")
        pm(WU_); self.kxsum(ACC, Z); self.red_write(Z, 15, 9216)
        a("v_lshlrev_b32 v4, 2, v0")
        a("s_waitcnt lgkmcnt(0)")
        self.bar()
        self.stamp(8)
        a("s_cmp_ge_u32 s3, 4"); a("s_cbranch_scc1 L_G_noact")
        G_, U_ = ACC, ACC + 10
        self.red_read(G_, 4, 9, RED // 256)
        self.red_read(U_, 4, 9, RED // 256 + 36)
        a("s_waitcnt lgkmcnt(5)")
        self.tree_add(G_, 9); self.rbf(G_)
        k1 = -2.0 * math.sqrt(2 / math.pi) * math.log2(math.e)
        a(f"v_mul_f32 v{G_+1}, v{G_}, v{G_}")
        a(f"v_mov_b32 v{G_+2}, {f32(k1)}")
        a(f"v_fmac_f32 v{G_+2}, {f32(k1*0.044715)}, v{G_+1}")
        a(f"v_mul_f32 v{G_+2}, v{G_+2}, v{G_}")
        a(f"v_exp_f32 v{G_+2}, v{G_+2}")
        a(f"v_add_f32 v{G_+2}, 1.0, v{G_+2}")
        a(f"v_rcp_f32 v{G_+2}, v{G_+2}")
        a(f"v_mul_f32 v{G_}, v{G_}, v{G_+2}"); self.rbf(G_)
        a("s_waitcnt lgkmcnt(0)")
        self.tree_add(U_, 9); self.rbf(U_)
        a(f"v_mul_f32 v{G_}, v{G_}, v{U_}")
        a(f"v_cvt_pk_bf16_f32 v{G_}, v{G_}, v{G_}")
        a("v_lshlrev_b32 v4, 1, v0")
        a(f"ds_write_b16 v4, v{G_} offset:{HB}")
        a("L_G_noact:")
        a("s_waitcnt vmcnt(0)")
        self.perm_unit(WD_, WG_, 8)
        a("s_waitcnt lgkmcnt(0)")
        self.bar()
        a(f"ds_read_b128 {vr(AF,4)}, v14 offset:{HB}")
        a("s_waitcnt lgkmcnt(0)")
        self.mfma_unit(ACC, AF, WG_, 8)
        self.out_unit(ACC, Z, 7, "s64")
        self.stamp(9)
        self.finish()

    def role_F(self):
        a = self.a; P = self.P
        RED = self.RED
        a("s_sub_u32 s62, s5, 9"); a("s_lshl_b32 s62, s62, 3"); a("s_add_u32 s62, s62, s4")
        a("s_cmp_ge_u32 s62, 36"); a("s_cbranch_scc1 L_fin")
        L0, L1, LY, S_, Y_, T = 16, 20, 24, 32, 40, 48
        a("v_lshlrev_b32 v5, 1, v1"); a("s_lshl_b32 s63, s62, 7")
        a(f"buffer_load_ushort v60, v5, {srd(SX)}, s63 offen")
        self.poll_flags(T, "all", P["fsleep"])
        self.stamp(7)
        a("s_mul_i32 s59, s62, 25600"); a(f"s_add_u32 s59, s59, {H3}")
        a("s_lshl_b32 s60, s3, 10"); a("s_add_u32 s61, s59, s60"); a("s_add_u32 s61, s61, 16384")
        a("s_lshl_b32 s60, s3, 11"); a("s_add_u32 s59, s59, s60")
        a("v_lshlrev_b32 v6, 4, v1")
        self.spin_head("L_F_y")
        a(f"buffer_load_dwordx4 {vr(LY,4)}, v6, {srd(SWS)}, s61 offen sc1")
        a("s_waitcnt vmcnt(0)")
        self.chk_max(LY, 4, T); a(f"v_cmp_eq_u32 vcc, -1, v{T}")
        self.spin_tail("L_F_y", sleep=P["fsleep"])
        self.stamp(8)
        def unpack(src, dst, acc):
            for q in range(4):
                if acc:
                    a(f"v_lshlrev_b32 v{T}, 16, v{src+q}"); a(f"v_and_b32 v{T+1}, 0xffff0000, v{src+q}")
                    a(f"v_add_f32 v{dst+2*q}, v{dst+2*q}, v{T}"); a(f"v_add_f32 v{dst+2*q+1}, v{dst+2*q+1}, v{T+1}")
                else:
                    a(f"v_lshlrev_b32 v{dst+2*q}, 16, v{src+q}"); a(f"v_and_b32 v{dst+2*q+1}, 0xffff0000, v{src+q}")
        def lane_reduce(b):
            for e in range(8): a(f"v_add_f32_dpp v{b+e}, v{b+e}, v{b+e} row_ror:8 row_mask:0xf bank_mask:0xf")
            for e in range(4): a(f"v_permlane32_swap_b32 v{b+e}, v{b+4+e}")
            for e in range(4): a(f"v_add_f32 v{b+e}, v{b+e}, v{b+4+e}")
            for e in range(2): a(f"v_permlane16_swap_b32 v{b+e}, v{b+2+e}")
            for e in range(2): a(f"v_add_f32 v{b+e}, v{b+e}, v{b+2+e}")
        a("v_and_b32 v7, 7, v1"); a("v_lshlrev_b32 v7, 5, v7"); a("v_lshl_add_u32 v7, v2, 3, v7")
        a("s_lshl_b32 s60, s3, 8"); a(f"s_add_u32 s60, s60, {RED}"); a("v_add_u32 v7, s60, v7")
        unpack(LY, Y_, False); lane_reduce(Y_)
        a(f"ds_write_b64 v7, {vr(Y_,2)} offset:4096")
        a("s_cmp_ge_u32 s3, 8"); a("s_cbranch_scc1 L_F_nos")
        self.spin_head("L_F_s")
        a(f"buffer_load_dwordx4 {vr(L0,4)}, v6, {srd(SWS)}, s59 offen sc1")
        a(f"buffer_load_dwordx4 {vr(L1,4)}, v6, {srd(SWS)}, s59 offen offset:1024 sc1")
        a("s_waitcnt vmcnt(0)")
        self.chk_max(L0, 8, T); a(f"v_cmp_eq_u32 vcc, -1, v{T}")
        self.spin_tail("L_F_s", sleep=P["fsleep"])
        self.stamp(9)
        unpack(L0, S_, False); unpack(L1, S_, True); lane_reduce(S_)
        a(f"ds_write_b64 v7, {vr(S_,2)}")
        a("L_F_nos:")
        a("s_waitcnt lgkmcnt(0)")
        self.bar()
        a("s_cmp_lg_u32 s3, 0"); a("s_cbranch_scc1 L_fin")
        a("v_lshlrev_b32 v4, 2, v1")
        o = RED // 256
        for k in range(0, 8, 2): a(f"ds_read2st64_b32 {vr(40+k,2)}, v4 offset0:{o+16+k} offset1:{o+17+k}")
        a(f"ds_read_b32 v48, v4 offset:{RED+4096+8*256}")
        for k in range(0, 8, 2): a(f"ds_read2st64_b32 {vr(16+k,2)}, v4 offset0:{o+k} offset1:{o+k+1}")
        a("s_waitcnt lgkmcnt(4)")
        self.tree_add(40, 9); self.rbf(40)
        a(f"v_mul_f32 v41, {f32(-math.log2(math.e))}, v40")
        a("v_exp_f32 v41, v41"); a("v_add_f32 v41, 1.0, v41"); a("v_rcp_f32 v41, v41")
        a("v_mul_f32 v40, v40, v41"); self.rbf(40)
        a("s_waitcnt lgkmcnt(0)")
        self.tree_add(16, 8); self.rbf(16)
        a("v_mul_f32 v16, v16, v40"); self.rbf(16)
        a("v_lshlrev_b32 v60, 16, v60")
        a("v_add_f32 v16, v16, v60")
        a("v_cvt_pk_bf16_f32 v16, v16, v16")
        a(f"buffer_store_short v16, v5, {srd(SOUT)}, s63 offen")
        a("s_cmp_lg_u32 s62, 0"); a("s_cbranch_scc1 L_F_noep")
        a(f"v_mov_b32 v17, {TAG}"); a("v_mov_b32 v18, 0")
        a("s_mov_b64 exec, 1")
        a(f"buffer_store_dword v17, v18, {srd(SWS)}, 0 offen offset:{EPOCH} sc1")
        self.fullmask()
        a("L_F_noep:")
        self.stamp(10)
        a("L_fin:")
        self.finish()

    def role_K(self):
        a = self.a; P = self.P; RS = self.RS
        QA = 131072
        MAXB, SUMB, VERD, PB = QA, QA + 1024, QA + 2048, QA + 4096
        WB, CC, RED, CT = QA + 16384, QA + 16384 + 256, QA + 20480, QA + 28672
        KA, BB, SC, WUV, WO = 16, 80, 96, 104, 120
        M1 = 152
        a("L_K:")
        a("s_sub_u32 s57, s5, 16")
        a("s_lshl_b32 s58, s4, 4"); a("s_add_u32 s58, s58, s57")
        for k in range(4): a(f"v_mov_b32 v{8+k}, -1")
        self.h3_addr(7, 4, "s64", "s58")
        a(f"v_mul_u32_u24 v12, {8*RS}, v3"); a("v_lshl_add_u32 v12, v2, 4, v12")
        a(f"s_mul_i32 s65, s3, {RS}"); a("s_lshl_b32 s59, s58, 7"); a("s_add_u32 s65, s65, s59"); a(f"s_add_u32 s65, s65, {H2}")
        a(f"s_add_u32 s66, s65, {128*RS}")
        a("v_lshlrev_b32 v5, 4, v1")
        a("s_lshl_b32 s59, s58, 17"); a("s_lshl_b32 s60, s3, 14"); a("s_add_u32 s59, s59, s60")
        a("s_waitcnt lgkmcnt(0)")
        self.stamp(1)
        self.lowmask()
        a(f"buffer_store_dwordx4 v[8:11], v7, {srd(SWS)}, s64 offen sc1")
        self.fullmask()
        a("s_cmp_eq_u32 s3, 8"); a("s_cbranch_scc1 L_K8")
        for sreg in ("s65", "s66"):
            for T_ in range(2): a(f"buffer_store_dwordx4 v[8:11], v12, {srd(SWS)}, {sreg} offen offset:{64*T_} sc1")
        for jr in range(16):
            if jr % 4 == 0:
                a(f"s_add_u32 m0, s60, {jr*1024}")
                if jr: a("s_add_u32 s59, s59, 4096")
            if P["kwin"] and jr >= P["kwin"]: a(f"s_waitcnt vmcnt({P['kwin']-1})")
            a(f"v_xor_b32 v4, {fsw(jr)*16}, v5")
            a(f"buffer_load_dwordx4 v4, {srd(SKV)}, s59 offen offset:{(jr%4)*1024} nt lds")
        self.stamp(2)
        def de_addr():
            a("s_lshr_b32 s67, s57, 2"); a("s_lshl_b32 s59, s4, 2"); a("s_add_u32 s67, s67, s59")
            self.unit_voff(14, 4, 1152, 8)
            a("s_lshl_b32 s68, s67, 1"); a("s_and_b32 s59, s57, 1"); a("s_add_u32 s68, s68, s59")
            a(f"s_mul_i32 s68, s68, {64*1152}"); a("s_lshl_b32 s61, s3, 7"); a("s_add_u32 s68, s68, s61")
        de_addr()
        self.unit_voff(13, 4, 8192, 4, gperm=True)
        a("s_lshl_b32 s69, s59, 7"); a("s_lshl_b32 s61, s67, 8"); a("s_add_u32 s69, s69, s61")
        a("s_and_b32 s61, s57, 2"); a("s_lshl_b32 s61, s61, 20"); a("s_add_u32 s69, s69, s61")
        a("s_lshl_b32 s61, s3, 18"); a("s_add_u32 s69, s69, s61")
        de_list = [("uv", r) for r in range(4)] + [("o", r) for r in range(8)]
        def de_load(k):
            kind, r = de_list[k]
            if kind == "uv":
                a(f"buffer_load_dwordx4 {vr(WUV+4*r,4)}, v13, {srd(SWUV)}, s69 offen nt"); a("s_add_u32 s69, s69, 8192")
            else:
                a(f"buffer_load_dwordx4 {vr(WO+4*r,4)}, v14, {srd(SWO)}, s68 offen nt"); a("s_add_u32 s68, s68, 1152")
        ne = P["de_early"]
        for k in range(ne): de_load(k)
        a("v_and_b32 v4, 1, v3"); a("v_bfe_u32 v6, v3, 1, 2"); a("v_lshl_or_b32 v4, v6, 2, v4")
        a("v_bfe_u32 v6, v3, 3, 1"); a("v_lshl_or_b32 v4, v6, 1, v4")
        a("v_lshlrev_b32 v4, 4, v4"); a("v_lshl_or_b32 v4, v2, 8, v4"); a("v_lshl_or_b32 v15, v3, 10, v4")
        a("v_add_u32 v6, s60, v15")
        a(f"v_add_u32 v15, {QA}, v15")
        a(f"s_waitcnt vmcnt({ne})")
        self.stamp(3)
        for s in range(16):
            a(f"v_xor_b32 v4, {16*s}, v6")
            a(f"ds_read_b128 {vr(KA+4*s,4)}, v4")
        PVA = M1
        a("v_lshrrev_b32 v4, 2, v1")
        a(f"v_and_b32 v{PVA}, 1, v4"); a(f"v_bfe_u32 v{PVA+1}, v4, 1, 2"); a(f"v_lshl_or_b32 v{PVA}, v{PVA+1}, 2, v{PVA}")
        a(f"v_bfe_u32 v{PVA+1}, v4, 3, 1"); a(f"v_lshl_or_b32 v{PVA}, v{PVA+1}, 1, v{PVA}")
        a(f"v_and_b32 v{PVA+1}, 3, v1"); a(f"v_xor_b32 v{PVA}, v{PVA}, v{PVA+1}")
        a("s_and_b32 s59, s3, 1"); a("s_lshl_b32 s59, s59, 3"); a(f"v_xor_b32 v{PVA}, s59, v{PVA}")
        a(f"v_lshlrev_b32 v{PVA}, 4, v{PVA}"); a(f"v_lshl_or_b32 v{PVA}, v4, 10, v{PVA}")
        a(f"v_and_b32 v{PVA+1}, 1, v1"); a(f"v_lshl_or_b32 v{PVA}, v{PVA+1}, 3, v{PVA}")
        a("s_lshr_b32 s59, s3, 1"); a("s_lshl_b32 s59, s59, 8"); a(f"v_or_b32 v{PVA}, s59, v{PVA}")
        a(f"v_xor_b32 v{PVA+1}, 8, v{PVA}"); a(f"v_xor_b32 v{PVA+2}, 64, v{PVA}"); a(f"v_xor_b32 v{PVA+3}, 72, v{PVA}")
        STW, STR, PW, PR = M1 + 4, M1 + 5, M1 + 6, M1 + 7
        a(f"v_and_b32 v{STW}, 31, v1"); a(f"v_lshlrev_b32 v{STW}, 5, v{STW}")
        a("s_lshl_b32 s59, s3, 2"); a(f"s_add_u32 s59, s59, {QA}"); a(f"v_add_u32 v{STW}, s59, v{STW}")
        a(f"v_lshlrev_b32 v{STR}, 5, v3"); a(f"v_add_u32 v{STR}, {QA}, v{STR}")
        a(f"v_add_u32 v{PR}, {QA}, v5")
        a("s_lshr_b32 s59, s3, 1"); a("s_lshl_b32 s59, s59, 11"); a("s_and_b32 s61, s3, 1"); a("s_lshl_b32 s61, s61, 3"); a("s_add_u32 s59, s59, s61")
        a(f"v_add_u32 v{PW}, s59, v{PR}")
        TM = M1 + 8
        a("s_mov_b32 s63, 0")
        a("L_K_qk:")
        a("s_waitcnt lgkmcnt(0)")
        self.bar()
        self.stamp(4)
        rest = list(range(ne, 12))
        NB = 4
        def bread(n):
            ht, s = n >> 4, n & 15
            a(f"v_xor_b32 v4, {16*s}, v15")
            a(f"ds_read_b128 {vr(BB+4*(n%NB),4)}, v4 offset:{16384*ht}")
        for n in range(NB - 1): bread(n)
        for n in range(32):
            ht, s = n >> 4, n & 15
            if n + NB - 1 < 32:
                bread(n + NB - 1); a(f"s_waitcnt lgkmcnt({NB-1})")
            else:
                a(f"s_waitcnt lgkmcnt({31-n})")
            c = "0" if s == 0 else vr(SC+4*ht, 4)
            a(f"v_mfma_f32_16x16x32_bf16 {vr(SC+4*ht,4)}, {vr(KA+4*s,4)}, {vr(BB+4*(n%NB),4)}, {c}")
            if n == 16: self.bar()
            if n == 26:
                a(f"v_max3_f32 v{TM}, v{SC}, v{SC+1}, v{SC+2}"); a(f"v_max_f32 v{TM}, v{TM}, v{SC+3}")
        a(f"v_max3_f32 v{TM+1}, v{SC+4}, v{SC+5}, v{SC+6}"); a(f"v_max_f32 v{TM+1}, v{TM+1}, v{SC+7}")
        a(f"v_permlane16_swap_b32 v{TM}, v{TM+1}"); a(f"v_max_f32 v{TM}, v{TM}, v{TM+1}")
        self.x32(TM, TM+1, "v_max_f32")
        a(f"ds_write_b32 v{STW}, v{TM}")
        a("s_waitcnt lgkmcnt(0)")
        self.bar()
        for k in range(4): a(f"ds_read_b128 {vr(BB+4*k,4)}, v{STR} offset:{(k>>1)*512+(k&1)*16}")
        a(f"v_mov_b32 v4, {VERD}"); a(f"ds_read_b32 v{TM+2}, v4")
        cs = 128 ** -0.5 * math.log2(math.e)
        a(f"s_mov_b32 s59, {f32(cs)}")
        for ht in range(2):
            a(f"s_waitcnt lgkmcnt({3-2*ht})")
            b_ = BB + 8 * ht
            a(f"v_max3_f32 v{b_}, v{b_}, v{b_+1}, v{b_+2}"); a(f"v_max3_f32 v{b_+3}, v{b_+3}, v{b_+4}, v{b_+5}")
            a(f"v_max3_f32 v{b_}, v{b_}, v{b_+6}, v{b_+7}"); a(f"v_max_f32 v{b_}, v{b_}, v{b_+3}")
            a(f"v_mul_f32 v{TM+4+ht}, s59, v{b_}")
            for r in range(4): a(f"v_fma_f32 v{SC+4*ht+r}, v{SC+4*ht+r}, s59, -v{TM+4+ht}")
            for r in range(4): a(f"v_exp_f32 v{SC+4*ht+r}, v{SC+4*ht+r}")
        a("s_waitcnt lgkmcnt(0)")
        a(f"v_readfirstlane_b32 s61, v{TM+2}")
        for ht in range(2):
            a(f"v_cvt_pk_bf16_f32 v{BB+2*ht}, v{SC+4*ht}, v{SC+4*ht+1}"); a(f"v_cvt_pk_bf16_f32 v{BB+2*ht+1}, v{SC+4*ht+2}, v{SC+4*ht+3}")
        a("s_cmp_lg_u32 s61, 0"); a("s_cbranch_scc1 L_K_retry")
        for ht in range(2): a(f"ds_write_b64 v{PW}, {vr(BB+2*ht,2)} offset:{PB-QA+1024*ht}")
        for ht in range(2):
            a(f"v_add_f32 v{SC+4*ht}, v{SC+4*ht}, v{SC+4*ht+1}"); a(f"v_add_f32 v{SC+4*ht+2}, v{SC+4*ht+2}, v{SC+4*ht+3}")
            a(f"v_add_f32 v{TM+ht}, v{SC+4*ht}, v{SC+4*ht+2}")
        a(f"v_permlane16_swap_b32 v{TM}, v{TM+1}"); a(f"v_add_f32 v{TM}, v{TM}, v{TM+1}")
        self.x32(TM, TM+1)
        a(f"ds_write_b32 v{STW}, v{TM} offset:1024")
        PF, OA = KA, KA + 32
        ABUF = [BB + 4, BB + 8, BB + 12, SC, SC + 4, BB]
        steps = [(T_, t, j) for T_ in range(2) for j in range(4) for t in range(2)]
        def aread(n):
            T_, t, j = steps[n]; b_ = ABUF[n % len(ABUF)]
            ad = PVA + 2 * T_ + t
            if j == 2: a(f"v_add_u32 v{ad}, 0x10000, v{ad}")
            for u in range(2): a(f"ds_read_b64_tr_b16 {vr(b_+2*u,2)}, v{ad} offset:{(j&1)*32768+u*16384}")
        NA = 5
        for n in range(3): aread(n)
        a("s_waitcnt lgkmcnt(6)")
        self.bar()
        self.stamp(5)
        for j in range(4):
            for ht in range(2): a(f"ds_read_b128 {vr(PF+8*j+4*ht,4)}, v{PR} offset:{PB-QA+2048*j+1024*ht}")
        for n in range(3, NA): aread(n)
        q = [("a", 0)] * 2 + [("a", 1)] * 2 + [("a", 2)] * 2 + [("p", j) for j in range(4) for _ in range(2)] + [("a", n) for n in range(3, NA) for _ in range(2)]
        def wait_for(tags):
            last = max(k for k, x in enumerate(q) if x in tags)
            a(f"s_waitcnt lgkmcnt({min(15, len(q) - 1 - last)})")
        LS = TM
        def norm_store(T_):
            for ht in range(2):
                for t in range(2):
                    b_ = OA + 16 * T_ + 8 * t + 4 * ht
                    for r in range(4): a(f"v_mul_f32 v{b_+r}, v{b_+r}, v{LS+ht}")
                d = OA + 16 * T_ + 4 * ht
                for t in range(2):
                    b_ = OA + 16 * T_ + 8 * t + 4 * ht
                    for r in range(2): a(f"v_cvt_pk_bf16_f32 v{d+2*t+r}, v{b_+2*r}, v{b_+2*r+1}")
                for r in range(4): a(f"v_min_u32 v{d+r}, -2, v{d+r}")
        for n in range(16):
            T_, t, j = steps[n]
            wait_for({("a", n), ("p", j)})
            for ht in range(2):
                d = OA + 16 * T_ + 8 * t + 4 * ht
                c = "0" if j == 0 else vr(d, 4)
                a(f"v_mfma_f32_16x16x32_bf16 {vr(d,4)}, {vr(ABUF[n%len(ABUF)],4)}, {vr(PF+8*j+4*ht,4)}, {c}")
            if n + NA < 16:
                aread(n + NA); q += [("a", n + NA)] * 2
            if rest and n < 12 and (n % 1 == 0):
                de_load(rest.pop(0))
            if n == 10:
                a(f"ds_read_b128 v[8:11], v{STR} offset:1024"); q.append(("s", 0))
            if n == 11:
                pass
        while rest: de_load(rest.pop(0))
        a(f"ds_read_b128 {vr(BB,4)}, v{STR} offset:{1024+16}")
        a(f"ds_read_b128 {vr(BB+4,4)}, v{STR} offset:{1024+512}")
        a(f"ds_read_b128 {vr(BB+8,4)}, v{STR} offset:{1024+528}")
        a("s_waitcnt lgkmcnt(0)")
        for r in range(4): a(f"v_add_f32 v{8+r}, v{8+r}, v{BB+r}");
        for r in range(4): a(f"v_add_f32 v{BB+4+r}, v{BB+4+r}, v{BB+8+r}")
        self.tree_add(8, 4); self.tree_add(BB + 4, 4)
        a(f"v_rcp_f32 v{LS}, v8"); a(f"v_rcp_f32 v{LS+1}, v{BB+4}")
        a(f"v_log_f32 v8, v8"); a(f"v_log_f32 v9, v{BB+4}")
        norm_store(0); norm_store(1)
        for ht, sreg in ((0, "s65"), (1, "s66")):
            for T_ in range(2):
                a(f"buffer_store_dwordx4 {vr(OA+16*T_+4*ht,4)}, v12, {srd(SWS)}, {sreg} offen offset:{64*T_} sc1")
        a("s_cmp_lg_u32 s3, 0"); a("s_cbranch_scc1 L_K_nolse")
        a(f"v_add_f32 v8, v8, v{TM+4}"); a(f"v_add_f32 v9, v9, v{TM+5}")
        a("v_permlane16_swap_b32 v8, v9")
        a("v_min_u32 v8, -2, v8")
        a("v_lshlrev_b32 v4, 2, v1"); a("s_lshl_b32 s59, s58, 7"); a(f"s_add_u32 s59, s59, {LSE}")
        a("s_mov_b32 exec_hi, 0")
        a(f"buffer_store_dword v8, v4, {srd(SWS)}, s59 offen sc1")
        self.fullmask()
        a("L_K_nolse:")
        self.stamp(6)
        GA, PUV, PO, TB, ACC = 16, 48, 64, 96, 120
        a("s_waitcnt vmcnt(4)")
        self.perm_unit(WUV, PUV, 4)
        self.perm_unit(WO, PO, 8)
        a("s_lshl_b32 s59, s67, 3"); a("s_and_b32 s61, s57, 2"); a("s_lshl_b32 s61, s61, 1"); a("s_add_u32 s59, s59, s61")
        a("s_and_b32 s61, s3, 3"); a("s_add_u32 s59, s59, s61"); a(f"s_mul_i32 s59, s59, {RS}")
        a("s_lshr_b32 s61, s3, 2"); a("s_lshl_b32 s61, s61, 13"); a("s_add_u32 s59, s59, s61"); a(f"s_add_u32 s59, s59, {H2}")
        self.unit_voff(13, 4, 128, 8)
        AW, CW, CA, RW, TA = M1, M1 + 1, M1 + 2, M1 + 3, M1 + 4
        a(f"v_bfe_u32 v4, v3, 2, 1"); a(f"v_lshlrev_b32 v4, 6, v4"); a(f"v_lshl_add_u32 v{AW}, v2, 4, v4")
        a("s_lshr_b32 s61, s3, 2"); a("s_lshl_b32 s60, s61, 7"); a(f"s_add_u32 s60, s60, {WB}"); a(f"v_add_u32 v{AW}, s60, v{AW}")
        a(f"v_and_b32 v4, 7, v1"); a(f"v_lshlrev_b32 v4, 4, v4"); a(f"v_lshl_add_u32 v{CW}, v2, 9, v4")
        a("s_lshl_b32 s60, s61, 10"); a("s_and_b32 s61, s3, 3"); a("s_lshl_b32 s61, s61, 7"); a("s_add_u32 s60, s60, s61")
        a(f"s_add_u32 s60, s60, {CC}"); a(f"v_add_u32 v{CW}, s60, v{CW}")
        self.afrag_addr(CA, 4, 512, 32, 8)
        a("s_lshl_b32 s60, s3, 6"); a(f"s_add_u32 s60, s60, {CC}"); a(f"v_add_u32 v{CA}, s60, v{CA}")
        a(f"v_and_b32 v{RW}, 7, v1"); a(f"v_lshlrev_b32 v{RW}, 5, v{RW}"); a(f"v_lshl_add_u32 v{RW}, v2, 8, v{RW}")
        a("s_lshl_b32 s60, s3, 10"); a(f"s_add_u32 s60, s60, {RED}"); a(f"v_add_u32 v{RW}, s60, v{RW}")
        self.bar()
        self.stamp(7)
        for r in range(8): a(f"buffer_load_dwordx4 {vr(GA+4*r,4)}, v13, {srd(SWS)}, s59 offen offset:{128*r} sc1")
        self.bar()
        AFR = M1 + 8
        a(f"ds_read_b128 {vr(AFR,4)}, v{AW}")
        a("s_mov_b32 s55, 0")
        a("L_K_h2:")
        a("s_waitcnt vmcnt(0)")
        self.chk_max(GA, 32, 4); a("v_cmp_eq_u32 vcc, -1, v4")
        a("s_cbranch_vccz L_K_h2ok")
        a("s_add_u32 s55, s55, 1"); a(f"s_cmp_ge_u32 s55, {SPIN}"); a("s_cbranch_scc1 L_K_h2ok")
        for r in range(8): a(f"buffer_load_dwordx4 {vr(GA+4*r,4)}, v13, {srd(SWS)}, s59 offen offset:{128*r} sc1")
        a("s_branch L_K_h2")
        a("L_K_h2ok:")
        self.stamp(8)
        a("s_waitcnt lgkmcnt(0)")
        TBs = [96, 100, 104]
        for e in range(8):
            p = e >> 1; sel = SELHI if e & 1 else SELLO; tb = TBs[e % 3]
            for q_ in range(4): a(f"v_perm_b32 v{tb+q_}, v{GA+4*(2*q_+1)+p}, v{GA+4*(2*q_)+p}, {sel}")
            if e > 0: a(f"v_mfma_f32_16x16x32_bf16 {vr(ACC+4*(e-1),4)}, {vr(AFR,4)}, {vr(TBs[(e-1)%3],4)}, 0")
        a(f"v_mfma_f32_16x16x32_bf16 {vr(ACC+28,4)}, {vr(AFR,4)}, {vr(TBs[7%3],4)}, 0")
        for q_ in range(4): a(f"v_cvt_pk_bf16_f32 v{108+q_}, v{ACC+8*q_}, v{ACC+8*q_+4}")
        a("s_mov_b32 exec_lo, 0xff0000ff"); a("s_mov_b32 exec_hi, 0")
        a(f"ds_write_b128 v{CW}, v[108:111]")
        self.fullmask()
        a("s_waitcnt lgkmcnt(0)")
        self.bar()
        a(f"ds_read_b64 {vr(AFR,2)}, v{CA}")
        a("s_waitcnt lgkmcnt(0)")
        self.mfma_unit(ACC, AFR, PUV, 4)
        self.kxsum(ACC, 112)
        self.red_write(112, RW)
        a("s_waitcnt lgkmcnt(0)")
        self.bar()
        a("s_cmp_ge_u32 s3, 4"); a("s_cbranch_scc1 L_K_e")
        a("v_lshlrev_b32 v4, 2, v0"); a(f"v_add_u32 v4, {RED}, v4")
        self.red_read(GA, 4, 8, 0)
        a("v_lshlrev_b32 v4, 1, v0"); a(f"v_add_u32 v4, {CT}, v4")
        a("s_waitcnt lgkmcnt(0)")
        self.tree_add(GA, 8)
        a(f"v_cvt_pk_bf16_f32 v{GA}, v{GA}, v{GA}")
        a(f"ds_write_b16 v4, v{GA}")
        a("L_K_e:")
        self.afrag_addr(TA, 4, 128, 64, 16)
        a(f"v_add_u32 v{TA}, {CT}, v{TA}")
        a("s_waitcnt lgkmcnt(0)")
        self.bar()
        a(f"ds_read_b128 {vr(AFR,4)}, v{TA}")
        a("s_waitcnt lgkmcnt(0)")
        self.mfma_unit(ACC, AFR, PO, 8)
        self.out_unit(ACC, 112, 7, "s64")
        self.stamp(9)
        self.finish()
        a("L_K_retry:")
        self.bar()
        a("s_branch L_K_qk")

        a("L_K8:")
        a("s_setprio 2")
        a(f"s_load_dword {TAG}, s[{SWS}:{SWS+1}], {EPOCH}")
        a("v_lshlrev_b32 v4, 2, v1"); a("s_lshl_b32 s59, s58, 7"); a(f"s_add_u32 s59, s59, {LSE}")
        a("s_mov_b32 exec_hi, 0")
        a(f"buffer_store_dword v8, v4, {srd(SWS)}, s59 offen sc1")
        self.fullmask()
        de_addr()
        a("s_waitcnt vmcnt(0) lgkmcnt(0)")
        self.mk_tag()
        self.stamp(2)
        self.poll_flags(16, "P", P["psleep"])
        self.stamp(3)
        a("s_mov_b32 s63, 0")
        a("L_K8_q:")
        a("s_lshr_b32 s59, s4, 1"); a("s_lshl_b32 s59, s59, 15"); a(f"s_add_u32 s59, s59, {H1}")
        for jr in range(32):
            if jr % 4 == 0:
                a(f"s_mov_b32 m0, {QA+jr*1024}")
                if jr: a("s_add_u32 s59, s59, 4096")
            a(f"v_xor_b32 v4, {fsw(jr&15)*16}, v5")
            a(f"buffer_load_dwordx4 v4, {srd(SWS)}, s59 offen offset:{(jr%4)*1024} sc1 lds")
        a(f"v_add_u32 v6, {QA}, v5")
        a("s_waitcnt vmcnt(0)")
        self.bar()
        self.stamp(4)
        self.store_flag(82)
        for half in range(2):
            for k in range(16): a(f"ds_read_b128 {vr(16+4*k,4)}, v6 offset:{(16*half+k)*1024}")
            a("s_waitcnt lgkmcnt(0)")
            if half == 0: self.bar()
            self.chk_max(16, 64, 80 + half)
        a("v_max_u32 v80, v80, v81")
        a("v_cmp_eq_u32 vcc, -1, v80")
        a("s_cmp_lg_u64 vcc, 0"); a("s_cselect_b32 s61, 1, 0")
        a("s_add_u32 s63, s63, 1"); a(f"s_cmp_lt_u32 s63, {SPIN}"); a("s_cselect_b32 s61, s61, 0")
        a("v_mov_b32 v80, s61"); a(f"v_mov_b32 v4, {VERD}")
        a("ds_write_b32 v4, v80")
        a("s_waitcnt lgkmcnt(0)")
        self.bar()
        a("s_cmp_eq_u32 s61, 0"); a("s_cbranch_scc1 L_K8_ok")
        self.bar()
        a("s_branch L_K8_q")
        a("L_K8_ok:")
        self.load_unit(WO, 8, "v14", SWO, "s68", 1152)
        self.bar()
        self.poll_flags(16, "K", P["psleep"])
        self.perm_unit(WO, PO, 8)
        self.stamp(6)
        a("v_lshlrev_b32 v6, 7, v1"); a("s_lshl_b32 s59, s67, 2"); a(f"s_add_u32 s59, s59, {LSE}"); a("s_add_u32 s60, s59, 8192")
        self.spin_head("L_K8_lse")
        a(f"buffer_load_dword v16, v6, {srd(SWS)}, s59 offen sc1")
        a(f"buffer_load_dword v17, v6, {srd(SWS)}, s60 offen sc1")
        a("s_waitcnt vmcnt(0)")
        a("v_max_u32 v18, v16, v17"); a("v_cmp_eq_u32 vcc, -1, v18")
        self.spin_tail("L_K8_lse", sleep=P["psleep"])
        self.bar()
        self.stamp(7)
        a("v_mov_b32 v18, v16"); a("v_mov_b32 v19, v17")
        for r in (8, 4, 2, 1):
            for v in (18, 19): a(f"v_max_f32_dpp v{v}, v{v}, v{v} row_ror:{r} row_mask:0xf bank_mask:0xf")
        self.x16(18, 20, "v_max_f32"); self.x16(19, 21, "v_max_f32")
        a("v_sub_f32 v16, v16, v18"); a("v_sub_f32 v17, v17, v19")
        a("v_exp_f32 v16, v16"); a("v_exp_f32 v17, v17")
        a("v_mov_b32 v18, v16"); a("v_mov_b32 v19, v17")
        for r in (8, 4, 2, 1):
            for v in (18, 19): a(f"v_add_f32_dpp v{v}, v{v}, v{v} row_ror:{r} row_mask:0xf bank_mask:0xf")
        self.x16(18, 20); self.x16(19, 21)
        a("v_rcp_f32 v18, v18"); a("v_rcp_f32 v19, v19")
        a("v_mul_f32 v16, v16, v18"); a("v_mul_f32 v17, v17, v19")
        a("v_cvt_pk_bf16_f32 v16, v16, v17")
        a("v_lshlrev_b32 v4, 1, v1"); a(f"v_add_u32 v4, {WB}, v4")
        a("ds_write_b16 v4, v16"); a("ds_write_b16_d16_hi v4, v16 offset:128")
        a("s_waitcnt lgkmcnt(0)")
        self.bar()
        self.bar()
        self.bar()
        a("s_branch L_K_e")

    def build(self):
        a = self.a
        self.prologue()
        self.role_P()
        self.role_K()
        if self.P["stamps"]:
            a("L_stampdump:")
            a("s_memrealtime s[100:101]")
            a("s_waitcnt vmcnt(0) lgkmcnt(0)")
            a("s_mul_i32 s59, s2, 9"); a("s_add_u32 s59, s59, s3"); a("s_lshl_b32 s59, s59, 6"); a(f"s_add_u32 s59, s59, {STAMP}")
            a("v_mov_b32 v4, 0")
            for k in range(16): a(f"v_writelane_b32 v4, s{70+2*k}, {k}")
            a("v_lshlrev_b32 v5, 2, v1")
            a("s_mov_b64 exec, 0xffff")
            a(f"buffer_store_dword v4, v5, {srd(SWS)}, s59 offen")
        a("L_end:")
        a("s_endpgm")
        a("L_codeend:")
        lines = a.lines
        if self.P["stamps"]:
            lines = [f"    s_mov_b32 s{70+2*k}, 0" for k in range(1, 16)] + lines
        lines, n = hazard.fix(lines)
        return single_file("\n".join(lines) + "\n", 256, 576, 163840, 168, 102, 168)

if __name__ == "__main__":
    import json
    P = json.loads(sys.argv[2]) if len(sys.argv) > 2 else {}
    open(sys.argv[1], "w").write(Gen(**P).build())
```
